```python
import torch

def _softmax(x, axis=-1):
    return torch.softmax(x, dim=axis)
def _gelu(x):
    return torch.nn.functional.gelu(x, approximate="tanh")
def _silu(x):
    return torch.nn.functional.silu(x)
def _sigmoid(x):
    return torch.sigmoid(x)
def _layernorm(x, axis=-1, eps=1e-5):
    m = x.mean(dim=axis, keepdim=True)
    v = x.var(dim=axis, keepdim=True, unbiased=False)
    return (x - m) / torch.sqrt(v + eps)
def _scatter_add(tgt, idx, src, axis=0):
    return tgt.clone().index_add_(axis, idx, src)
def _segment_sum(src, seg, n):
    out = torch.zeros((n,) + src.shape[1:], dtype=src.dtype)
    return out.index_add_(0, seg, src)
def _pad(x, pw):
    flat = tuple(v for pair in reversed(pw) for v in pair)
    return torch.nn.functional.pad(x, flat)

kernel_name = 'concat_heads__sliding_block__spectral_fnet__prompt'

def setup_inputs():

    _w = (lambda a: (lambda t: t.to(torch.bfloat16) if t.is_floating_point() else t)(torch.as_tensor(a)))
    def _A_setup():
        B, S, D = 1, 2048, 640
        return {
            "x": _w((lambda *s: torch.randn(*s, dtype=torch.bfloat16) * 0.2)(B, S, D)),
            "wqkv": _w((lambda *s: torch.randn(*s, dtype=torch.bfloat16) * 0.8)(D, 3 * D)),
            "wo": _w((lambda *s: torch.randn(*s, dtype=torch.bfloat16) * 0.2)(D, D)),
        }
    _A_in = _A_setup()

    def _B_setup():
        B, S, D = 1, 2048, 640
        ns = torch.arange(S)[:, None] * torch.arange(S)[None, :]
        nd = torch.arange(D)[:, None] * torch.arange(D)[None, :]
        Ws_re = torch.cos(-2.0 * torch.pi * ns / S).to(float)
        Ws_im = torch.sin(-2.0 * torch.pi * ns / S).to(float)
        Wd_re = torch.cos(-2.0 * torch.pi * nd / D).to(float)
        Wd_im = torch.sin(-2.0 * torch.pi * nd / D).to(float)
        return {
            "x": _w((lambda *s: torch.randn(*s, dtype=torch.bfloat16) * 0.05)(B, S, D)),
            "dft_seq_re": _w(Ws_re),
            "dft_seq_im": _w(Ws_im),
            "dft_hid_re": _w(Wd_re),
            "dft_hid_im": _w(Wd_im),
        }
    _B_in = _B_setup()

    return {
        "A_x": _A_in["x"],
        "A_wqkv": _A_in["wqkv"],
        "A_wo": _A_in["wo"],
        "B_x": _B_in["x"],
        "B_dft_seq_re": _B_in["dft_seq_re"],
        "B_dft_seq_im": _B_in["dft_seq_im"],
        "B_dft_hid_re": _B_in["dft_hid_re"],
        "B_dft_hid_im": _B_in["dft_hid_im"],
    }

def reference(A_x, A_wqkv, A_wo, B_x, B_dft_seq_re, B_dft_seq_im, B_dft_hid_re, B_dft_hid_im):
    def _A_ref(x, wqkv, wo):
        B, S, D = x.shape
        H = 32; Dh = D // H; W = 256
        qkv = (lambda x, *d: x.permute(*d))((x @ wqkv).reshape(B, S, 3, H, Dh), 2, 0, 3, 1, 4)
        q, k, v = qkv[0], qkv[1], qkv[2]
        scores = torch.einsum("bhqd,bhkd->bhqk", q, k) * (Dh ** -0.5)
        idx = torch.arange(S)
        mask = (idx[:, None] - idx[None, :] >= 0) & (idx[:, None] - idx[None, :] < W)
        scores = torch.where(mask[None, None], scores, -1e9)
        p = _softmax(scores, axis=-1)
        o = torch.einsum("bhqk,bhkd->bhqd", p, v)
        return (lambda x, *d: x.permute(*d))(o, 0, 2, 1, 3).reshape(B, S, D) @ wo

    def _B_ref(x, dft_seq_re, dft_seq_im, dft_hid_re, dft_hid_im):
        a = torch.einsum("bsd,ed->bse", x, dft_hid_re)
        b = torch.einsum("bsd,ed->bse", x, dft_hid_im)
        y = torch.einsum("ts,bse->bte", dft_seq_re, a) - torch.einsum("ts,bse->bte", dft_seq_im, b)
        return y

    a = _A_ref(A_x, A_wqkv, A_wo)
    b = _B_ref(B_x, B_dft_seq_re, B_dft_seq_im, B_dft_hid_re, B_dft_hid_im)
    return torch.concatenate([a, b], axis=-1)
```

```python
import math, struct

NAME = "concat_heads__sliding_block__spectral_fnet__prompt"
KA = dict(x=0, wqkv=8, wo=16, bx=24, sre=32, sim=40, hre=48, him=56, out=64, dbg=72, ws=80)
SZ = dict(x=2621440, wqkv=2457600, wo=819200, bx=2621440, sre=8388608, sim=8388608, hre=819200, him=819200,
          out=5242880, dbg=256, ws=268435456)
WS_Q = 0
WS_K = 2621440
WS_V = 5242880
WS_O = 7864320
WS_B = 16 << 20
WS_T = 32 << 20

def f2u(x): return struct.unpack("<I", struct.pack("<f", x))[0]

class G:
    def __init__(s): s.l = []; s.uid = 0
    def __call__(s, t):
        for ln in t.split("\n"):
            ln = ln.strip()
            if ln: s.l.append(("" if ln.endswith(":") else "  ") + ln)
    def lab(s, p):
        s.uid += 1; return f"L_{p}_{s.uid}"
    def srd(s, r, base, nbytes):
        s(f"s_mov_b32 s{r}, s{base}\ns_mov_b32 s{r+1}, s{base+1}\ns_mov_b32 s{r+2}, {nbytes}\ns_mov_b32 s{r+3}, 0x20000")
    def begin(s, name):
        s.l.append(f".globl {name}\n.p2align 8\n.type {name},@function\n{name}:")
    def text(s): return "\n".join(s.l) + "\n"

def vr(a, n=1): return f"v{a}" if n == 1 else f"v[{a}:{a+n-1}]"
def ar(a, n=1): return f"a{a}" if n == 1 else f"a[{a}:{a+n-1}]"
def sr(a, n=1): return f"s{a}" if n == 1 else f"s[{a}:{a+n-1}]"

def desc(name, vgpr, sgpr=96, agpr=0):
    acc = (vgpr + 3) // 4 * 4
    tot = acc + agpr if agpr else vgpr
    return f""".p2align 6
.amdhsa_kernel {name}
  .amdhsa_next_free_vgpr {tot}
  .amdhsa_next_free_sgpr {sgpr}
  .amdhsa_accum_offset {acc}
  .amdhsa_group_segment_fixed_size 0
  .amdhsa_kernarg_size 88
  .amdhsa_user_sgpr_count 2
  .amdhsa_user_sgpr_kernarg_segment_ptr 1
  .amdhsa_system_sgpr_workgroup_id_x 1
  .amdhsa_float_denorm_mode_32 3
.end_amdhsa_kernel
"""

def stamp_begin(g, sbase):
    g(f"s_memrealtime s[{sbase}:{sbase+1}]\ns_memtime s[{sbase+2}:{sbase+3}]")
```

```python
from common import *

QSCALE = (20 ** -0.5) * math.log2(math.e)

def stamp(g, idx, diag):
    if diag: g(f"s_memtime s[{70+2*idx}:{71+2*idx}]")

def stamp_out(g, kidx, n, diag, srd=16):
    if not diag: return
    L = g.lab("st")
    g("s_memrealtime s[66:67]\ns_waitcnt lgkmcnt(0)")
    g("v_cmp_eq_u32 vcc, 0, v0\ns_and_saveexec_b64 s[90:91], vcc")
    g(f"s_cbranch_execz {L}")
    g(f"s_lshl_b32 s92, s2, 6\ns_add_u32 s92, s92, {WS_T + kidx*65536}\nv_mov_b32 v1, s92")
    g(f"v_mov_b32 v2, s64\nbuffer_store_dword v2, v1, s[{srd}:{srd+3}], 0 offen")
    g(f"v_mov_b32 v2, s66\nbuffer_store_dword v2, v1, s[{srd}:{srd+3}], 0 offen offset:4")
    for i in range(n):
        g(f"s_sub_u32 s93, s{70+2*i}, s68\nv_mov_b32 v2, s93\nbuffer_store_dword v2, v1, s[{srd}:{srd+3}], 0 offen offset:{8+4*i}")
    g(f"{L}:\ns_mov_b64 exec, s[90:91]")

def k1(g, name="k1_kernel", diag=False, st_flags=""):
    g.begin(name)
    END = g.lab("k1end")
    if diag: g("s_memrealtime s[64:65]\ns_memtime s[68:69]")
    g(f"s_cmp_ge_u32 s2, 240\ns_cbranch_scc1 {END}")
    g(f"s_load_dwordx4 s[4:7], s[0:1], {KA['x']}\ns_load_dwordx2 s[24:25], s[0:1], {KA['ws']}")
    M1 = g.lab("m")
    g(f"""
    s_and_b32 s26, s2, 7
    s_lshr_b32 s27, s2, 3
    s_and_b32 s28, s26, 1
    s_lshr_b32 s26, s26, 1
    s_lshl_b32 s26, s26, 2
    s_mul_i32 s29, s28, 5
    s_and_b32 s20, s27, 3
    s_lshr_b32 s30, s27, 2
    s_lshl_b32 s30, s30, 1
    s_mul_i32 s31, s30, 13
    s_lshr_b32 s31, s31, 6
    s_mul_i32 s31, s31, 5
    s_add_u32 s21, s30, s31
    s_add_u32 s21, s21, s29
    s_add_u32 s30, s30, 1
    s_mul_i32 s31, s30, 13
    s_lshr_b32 s31, s31, 6
    s_mul_i32 s31, s31, 5
    s_add_u32 s22, s30, s31
    s_add_u32 s22, s22, s29
    s_cmp_lt_u32 s27, 28
    s_cbranch_scc1 {M1}
    s_sub_u32 s20, s27, 28
    s_lshl_b32 s28, s28, 1
    s_add_u32 s20, s20, s28
    s_mov_b32 s21, 24
    s_mov_b32 s22, 29
    {M1}:
    s_add_u32 s20, s20, s26
    """)
    g("v_lshrrev_b32 v1, 6, v0\nv_and_b32 v2, 63, v0\ns_nop 0\nv_readfirstlane_b32 s23, v1")
    g("""
    v_lshrrev_b32 v3, 3, v2
    v_lshrrev_b32 v4, 4, v2
    v_and_b32 v5, 7, v2
    s_lshl_b32 s31, s20, 7
    s_lshl_b32 s32, s23, 5
    s_add_u32 s31, s31, s32
    v_add_u32 v3, s31, v3
    v_mul_u32_u24 v3, 1280, v3
    v_xor_b32 v6, v4, v5
    v_lshl_add_u32 v10, v6, 4, v3
    v_xor_b32 v6, 4, v6
    v_lshl_add_u32 v11, v6, 4, v3
    """)
    g(f"v_add_u32 v12, {2*(8*1280-1024)}, v10\nv_add_u32 v13, {3*(8*1280-1024)}, v11\nv_add_u32 v11, {8*1280-1024}, v11")
    g("""
    v_and_b32 v5, 15, v2
    v_lshlrev_b32 v6, 2, v4
    v_xor_b32 v5, v5, v6
    s_lshl_b32 s31, s21, 7
    s_lshl_b32 s32, s22, 7
    v_mov_b32 v6, s31
    v_mov_b32 v7, s32
    v_cmp_gt_u32 vcc, 8, v5
    v_and_b32 v5, 7, v5
    s_lshl_b32 s33, s23, 4
    v_cndmask_b32 v6, v7, v6, vcc
    v_add_u32 v7, s33, v4
    v_mul_u32_u24 v7, 3840, v7
    v_lshl_add_u32 v6, v5, 4, v6
    v_add_u32 v14, v6, v7
    """)
    for j in range(1, 4): g(f"v_add_u32 v{14+j}, {j*(4*3840-1024)}, v14")
    g("s_lshl_b32 s34, s23, 12\ns_mov_b32 s35, 0\ns_mov_b32 s36, 0")
    g("s_waitcnt lgkmcnt(0)")
    g.srd(8, 4, SZ['x']); g.srd(12, 6, SZ['wqkv']); g.srd(16, 24, SZ['ws'])

    NS = 10
    def dma_ops(k):
        slot = k % 4
        ops = []
        for j in range(4):
            pre = f"s_add_u32 m0, s34, {slot*32768}\ns_nop 0\n" if j == 0 else ""
            ops.append(pre + f"buffer_load_dwordx4 v{10+j}, s[8:11], s35 offen offset:{1024*j} lds")
        for j in range(4):
            pre = f"s_add_u32 m0, s34, {slot*32768+16384}\ns_nop 0\n" if j == 0 else ""
            post = "\ns_add_u32 s35, s35, 128\ns_add_u32 s36, s36, 245760" if j == 3 else ""
            ops.append(pre + f"buffer_load_dwordx4 v{14+j}, s[12:15], s36 offen offset:{1024*j} lds" + post)
        return ops
    for o in dma_ops(0): g(o)
    g("s_barrier")
    for o in dma_ops(1): g(o)
    g("""
    s_lshr_b32 s37, s23, 1
    s_and_b32 s38, s23, 1
    v_and_b32 v3, 31, v2
    v_lshrrev_b32 v4, 5, v2
    v_bfe_u32 v5, v2, 1, 3
    v_xor_b32 v5, v5, v4
    s_lshl_b32 s31, s37, 6
    v_add_u32 v6, s31, v3
    v_lshlrev_b32 v6, 7, v6
    v_lshl_add_u32 v22, v5, 4, v6
    v_xor_b32 v23, 32, v22
    v_xor_b32 v24, 64, v22
    v_xor_b32 v25, 96, v22
    """)
    g("""
    v_bfe_u32 v5, v2, 2, 2
    v_bfe_u32 v6, v2, 4, 1
    v_bfe_u32 v7, v2, 1, 1
    v_lshl_add_u32 v6, v6, 1, v7
    s_lshl_b32 s31, s38, 3
    v_add_u32 v6, s31, v6
    v_lshlrev_b32 v7, 2, v5
    v_xor_b32 v6, v6, v7
    v_lshl_add_u32 v5, v4, 3, v5
    v_lshlrev_b32 v5, 8, v5
    v_lshl_add_u32 v5, v6, 4, v5
    v_and_b32 v7, 1, v2
    v_lshl_add_u32 v26, v7, 3, v5
    v_xor_b32 v27, 64, v26
    """)
    for i in range(6): g(f"v_add_u32 v{28+i}, 0x10000, v{22+i}")
    g("s_barrier")
    for o in dma_ops(2): g(o)
    g(f"""
    s_cmp_eq_u32 s38, 0
    s_cselect_b32 s39, s21, s22
    s_mul_i32 s40, s39, 205
    s_lshr_b32 s40, s40, 11
    s_mul_i32 s41, s40, 10
    s_sub_u32 s41, s39, s41
    s_mul_i32 s42, s40, {WS_K}
    s_lshl_b32 s31, s20, 7
    s_lshl_b32 s32, s37, 6
    s_add_u32 s31, s31, s32
    v_add_u32 v3, s31, v3
    v_mul_u32_u24 v3, 80, v3
    v_add_u32 v3, s42, v3
    s_lshl_b32 s41, s41, 3
    v_add_u32 v4, s41, v4
    s_mov_b32 s43, {163840-80}
    """)
    for q in range(4):
        g(f"""
        v_add_u32 v5, {2*q}, v4
        v_mul_u32_u24 v6, 205, v5
        v_lshrrev_b32 v6, 10, v6
        v_lshl_add_u32 v7, v5, 4, v3
        v_mad_u32_u24 v{18+q}, v6, s43, v7
        """)
    ACC = 68
    def fr(s): return 36 + 16 * (s & 1)
    def reads(s):
        k, ks = divmod(s, 4); slot = k % 4
        hi = 6 * (slot >> 1); so = (slot & 1) * 32768
        b = fr(s); r = []
        for nt in range(2):
            for sec in range(2):
                r.append(f"ds_read_b64_tr_b16 {vr(b+4*nt+2*sec,2)}, v{26+hi+nt} offset:{so+16384+ks*4096+sec*1024}")
        for mt in range(2):
            r.append(f"ds_read_b128 {vr(b+8+4*mt,4)}, v{22+hi+ks} offset:{so+mt*4096}")
        return [r[0], r[1], r[4], r[5], r[2], r[3]]
    def mf(s, nt, mt):
        b = fr(s); a = ACC + 16 * (2 * nt + mt)
        c = "0" if s == 0 else vr(a, 16)
        return f"v_mfma_f32_32x32x16_bf16 {vr(a,16)}, {vr(b+4*nt,4)}, {vr(b+8+4*mt,4)}, {c}"
    g("s_waitcnt vmcnt(16)\ns_barrier")
    stamp(g, 0, diag)
    for r in reads(0): g(r)
    pend = []
    for s in range(40):
        k, ks = divmod(s, 4)
        nxt = reads(s + 1) if s < 39 else []
        g("s_waitcnt lgkmcnt(0)")
        if ks == 3 and k < NS - 1:
            g(mf(s, 0, 0)); g(mf(s, 0, 1))
            assert not pend
            g(f"s_waitcnt vmcnt({8 if k+2 < NS else 0})\ns_barrier")
            for r in nxt: g(r)
            pend = dma_ops(k + 3) if k + 3 < NS else []
            g(mf(s, 1, 0))
            if pend: g(pend.pop(0))
            g(mf(s, 1, 1))
            if pend: g(pend.pop(0))
        else:
            ms = [mf(s, 0, 0), mf(s, 0, 1), mf(s, 1, 0), mf(s, 1, 1)]
            for i, m in enumerate(ms):
                g(m)
                if i < 3:
                    for r in nxt[2*i:2*i+2]: g(r)
                if i in (1, 3) and pend: g(pend.pop(0))
    stamp(g, 1, diag)
    NOQ = g.lab("noq")
    g("s_nop 7\ns_nop 3")
    g(f"s_cmp_ge_u32 s39, 10\ns_cbranch_scc1 {NOQ}")
    g(f"s_mov_b32 s44, {f2u(QSCALE)}\ns_mov_b32 s45, s44")
    for i in range(0, 64, 2): g(f"v_pk_mul_f32 {vr(ACC+i,2)}, {vr(ACC+i,2)}, s[44:45]")
    g(f"{NOQ}:")
    T = 36
    n = 0
    for nt in range(2):
        for mt in range(2):
            a = ACC + 16 * (2 * nt + mt)
            for jp in range(2):
                t = T + 4 * (n % 8); n += 1
                for i in range(4): g(f"v_cvt_pk_bf16_f32 v{t+i}, v{a+8*jp+2*i}, v{a+8*jp+2*i+1}")
                g(f"s_nop 1\nv_permlane32_swap_b32 v{t}, v{t+2}\nv_permlane32_swap_b32 v{t+1}, v{t+3}")
                g(f"buffer_store_dwordx4 {vr(t,4)}, v{18+2*nt+jp}, s[16:19], 0 offen offset:{2560*mt} {st_flags}")
    if diag:
        stamp(g, 2, diag)
        g("s_waitcnt vmcnt(0)")
        stamp(g, 3, diag)
        stamp_out(g, 0, 4, diag)
    g(f"{END}:\ns_endpgm")
    return desc(name, 132)
```

```python
from common import *
from k1 import stamp, stamp_out

K2_LDS = 65536 + 64 * 640
def k2(g, name="k2_kernel", diag=False, st_flags=""):
    g.begin(name)
    END = g.lab("k2end")
    if diag: g("s_memrealtime s[64:65]\ns_memtime s[68:69]")
    g(f"s_cmp_ge_u32 s2, 256\ns_cbranch_scc1 {END}")
    g(f"s_load_dwordx2 s[24:25], s[0:1], {KA['ws']}")
    g("""
    s_and_b32 s26, s2, 7
    s_lshr_b32 s27, s2, 3
    s_and_b32 s28, s26, 1
    s_lshr_b32 s26, s26, 1
    s_lshl_b32 s26, s26, 2
    s_and_b32 s20, s27, 3
    s_add_u32 s20, s20, s26
    s_lshr_b32 s21, s27, 2
    s_lshl_b32 s28, s28, 3
    s_add_u32 s21, s21, s28
    v_lshrrev_b32 v1, 6, v0
    v_and_b32 v2, 63, v0
    v_lshlrev_b32 v3, 4, v2
    v_readfirstlane_b32 s23, v1
    """)
    g(f"""
    s_mul_i32 s30, s21, 163840
    s_mul_i32 s31, s20, 10240
    s_add_u32 s30, s30, s31
    s_lshl_b32 s32, s23, 12
    s_add_u32 s33, s30, s32
    s_add_u32 s33, s33, {WS_K - 20480}
    s_add_u32 s34, s33, {WS_V - WS_K}
    s_lshr_b32 s26, s23, 2
    s_and_b32 s27, s23, 3
    s_lshl_b32 s28, s20, 2
    s_add_u32 s28, s28, s27
    s_add_u32 s29, s28, 1
    s_min_u32 s29, s29, 9
    s_mov_b32 m0, s32
    s_waitcnt lgkmcnt(0)
    """)
    g.srd(16, 24, SZ['ws'])
    for j in range(4): g(f"buffer_load_dwordx4 v3, s[16:19], s33 offen offset:{1024*j} lds")
    g("""
    v_and_b32 v4, 31, v2
    v_lshrrev_b32 v5, 5, v2
    s_lshl_b32 s35, s27, 5
    v_add_u32 v6, s35, v4
    v_mul_u32_u24 v6, 80, v6
    s_mul_i32 s36, s26, 48
    v_lshl_add_u32 v7, v5, 4, v6
    v_add_u32 v16, s36, v7
    """)
    g(f"buffer_load_dwordx4 v[8:11], v16, s[16:19], s30 offen")
    g(f"buffer_load_dwordx4 v[12:15], v6, s[16:19], s30 offen offset:32")
    g("s_add_u32 m0, s32, 32768\ns_nop 0")
    for j in range(4): g(f"buffer_load_dwordx4 v3, s[16:19], s34 offen offset:{1024*j} lds")
    ONES = 65536
    g(f"""
    v_mul_u32_u24 v7, 640, v2
    v_mov_b32 v20, 0x3f803f80
    v_mov_b32 v21, v20
    v_mov_b32 v22, v20
    v_mov_b32 v23, v20
    v_add_u32 v7, {ONES}, v7
    ds_write_b128 v7, v[20:23]
    s_mov_b32 s40, 0
    s_mov_b32 s41, -1
    v_mov_b32 v19, {ONES}
    v_add_u32 v17, 32, v6
    v_cndmask_b32 v17, v17, v19, s[40:41]
    """)
    g(f"""
    v_bfe_u32 v7, v2, 2, 2
    v_lshl_add_u32 v7, v5, 2, v7
    v_add_u32 v7, s35, v7
    v_mul_u32_u24 v7, 80, v7
    v_bfe_u32 v20, v2, 4, 1
    v_and_b32 v21, 3, v2
    v_lshl_add_u32 v20, v20, 2, v21
    s_mul_i32 s36, s26, 40
    s_add_u32 s36, s36, 32768
    v_lshl_add_u32 v7, v20, 3, v7
    v_add_u32 v7, s36, v7
    v_cmp_gt_u32 vcc, 5, v20
    v_mov_b32 v21, 0xff800000
    v_lshlrev_b32 v22, 2, v5
    v_cndmask_b32 v18, v19, v7, vcc
    """)
    MD, MT = 32, 48
    g("v_sub_u32 v22, v4, v22")
    for r in range(16):
        kl = 8 * (r >> 2) + (r & 3)
        g(f"v_cmp_le_i32 vcc, {kl}, v22\ns_nop 1\nv_cndmask_b32 v{MD+r}, v21, 0, vcc\nv_cndmask_b32 v{MT+r}, 0, v21, vcc")
    g(f"""
    s_lshl_b32 s36, s28, 5
    v_add_u32 v7, s36, v4
    v_mul_u32_u24 v7, 1280, v7
    s_mul_i32 s36, s21, 80
    s_mul_i32 s37, s26, 40
    s_add_u32 s36, s36, s37
    s_add_u32 s36, s36, {WS_O}
    v_lshl_add_u32 v7, v5, 3, v7
    v_add_u32 v24, s36, v7
    """)
    g("""
    s_cmp_eq_u32 s26, 0
    s_cselect_b32 s42, -1, 0
    s_cselect_b32 s43, 0, -1
    s_waitcnt vmcnt(4)
    v_and_b32 v12, s42, v12
    v_and_b32 v13, s42, v13
    v_and_b32 v14, s43, v14
    v_and_b32 v15, s43, v15
    v_cndmask_b32 v12, v12, 0, s[40:41]
    v_cndmask_b32 v13, v13, 0, s[40:41]
    v_cndmask_b32 v14, v14, 0, s[40:41]
    v_cndmask_b32 v15, v15, 0, s[40:41]
    v_mov_b32 v25, v12
    v_mov_b32 v26, v13
    s_waitcnt vmcnt(0) lgkmcnt(0)
    s_barrier
    """)
    stamp(g, 0, diag)
    S = [64, 80]; O = 96; P = 112; KF = [120, 128]; VF = [136, 144]
    def kreads(t, b):
        return [f"ds_read_b128 {vr(KF[b],4)}, v16 offset:{2560*t}", f"ds_read_b128 {vr(KF[b]+4,4)}, v17 offset:{2560*t}"]
    def vreads(t, b):
        return [f"ds_read_b64_tr_b16 {vr(VF[b]+2*i,2)}, v18 offset:{2560*t+640*i}" for i in range(4)]
    def cin(t): return vr(MD, 16) if t == 8 else (vr(MT, 16) if t == 0 else "0")
    def qk(t, kb, sb):
        return [f"v_mfma_f32_32x32x16_bf16 {vr(S[sb],16)}, {vr(KF[kb],4)}, v[8:11], {cin(t)}",
                f"v_mfma_f32_32x32x16_bf16 {vr(S[sb],16)}, {vr(KF[kb]+4,4)}, v[12:15], {vr(S[sb],16)}"]
    def maxtree(sb, dst, first):
        s = S[sb]
        if first:
            g(f"v_max3_f32 v{dst}, v{s}, v{s+1}, v{s+2}\nv_max_f32 v{dst}, v{dst}, v{s+3}")
            rest = range(4, 16, 2)
        else: rest = range(0, 16, 2)
        for i in rest: g(f"v_max3_f32 v{dst}, v{dst}, v{s+i}, v{s+i+1}")
    SLOW = g.lab("slow"); SET = g.lab("set"); EPI = g.lab("epi"); OUT = g.lab("out")
    g("s_mov_b32 s44, 0")
    g(f"s_cmp_eq_u32 s28, 0\ns_cbranch_scc1 {SLOW}")
    for r in kreads(7, 0): g(r)
    g("s_waitcnt lgkmcnt(0)")
    for m in qk(7, 0, 0): g(m)
    g("s_nop 7\ns_nop 3")
    maxtree(0, 27, True)
    g(f"{SET}:")
    for r in kreads(8, 0) + kreads(7, 1) + vreads(8, 0): g(r)
    g("""
    v_mov_b32 v28, v27
    s_nop 1
    v_permlane32_swap_b32 v27, v28
    s_nop 0
    v_max_f32 v27, v27, v28
    v_cvt_pk_bf16_f32 v28, 0, -v27
    v_sub_f32 v29, -v27, v28
    v_cvt_pk_bf16_f32 v30, 0, v29
    v_sub_f32 v29, v29, v30
    v_cvt_pk_bf16_f32 v28, v28, v30
    v_cvt_pk_bf16_f32 v29, v29, 0
    v_cndmask_b32 v12, v25, v28, s[40:41]
    v_cndmask_b32 v13, v26, v29, s[40:41]
    s_waitcnt lgkmcnt(6)
    """)
    for m in qk(8, 0, 0): g(m)
    for n in range(9):
        t = 8 - n; b = n & 1; s = S[b]
        last = (n == 8)
        ex = [f"v_exp_f32 v{s+i}, v{s+i}" for i in range(16)]
        cv = [f"v_cvt_pk_bf16_f32 v{P+i}, v{s+2*i}, v{s+2*i+1}" for i in range(8)]
        pv = [f"v_mfma_f32_32x32x16_bf16 {vr(O,16)}, {vr(VF[b]+4*m,4)}, {vr(P+4*m,4)}, {'0' if (n==0 and m==0) else vr(O,16)}" for m in range(2)]
        if not last:
            q = qk(t - 1, 1 - b, 1 - b)
            g("s_waitcnt lgkmcnt(4)")
            g(q[0])
            if n == 0: g("s_nop 7")
        else:
            pass
        if n == 0: g("s_nop 1")
        for e in ex[0:4]: g(e)
        if not last: g(q[1])
        kr = kreads(t - 2, b) if t >= 2 else []
        for e in ex[4:8]: g(e)
        for r in kr: g(r)
        for c in cv[0:4]: g(c)
        for e in ex[8:12]: g(e)
        g(f"s_waitcnt lgkmcnt({len(kr)})")
        g(pv[0])
        for e in ex[12:16]: g(e)
        vrd = vreads(t - 1, 1 - b) if not last else []
        for r in vrd: g(r)
        for c in cv[4:8]: g(c)
        if not last: g(f"s_cmp_eq_u32 s29, {n+1}")
        else: g("s_nop 0")
        g("s_nop 0")
        g(pv[1])
        if not last: g(f"s_cbranch_scc1 {EPI}")
    g(f"{EPI}:")
    g("s_waitcnt lgkmcnt(0)\ns_nop 7\ns_nop 3")
    stamp(g, 1, diag)
    g(f"""
    v_mov_b32 v28, v{O+8}
    v_mov_b32 v29, v{O+8}
    s_nop 1
    v_permlane32_swap_b32 v28, v29
    s_nop 0
    v_rcp_f32 v28, v29
    s_mov_b32 s45, {f2u(2.0**120)}
    v_cmp_nlt_f32 vcc, v29, s45
    """)
    for i in range(12): g(f"v_mul_f32 v{S[0]+i}, v28, v{O+i}")
    g(f"v_add_f32 v30, v{S[0]}, v{S[0]+1}")
    for i in range(2, 12): g(f"v_add_f32 v30, v30, v{S[0]+i}")
    g(f"""
    v_mov_b32 v31, 0x207
    v_cmp_class_f32 s[46:47], v30, v31
    s_nop 3
    s_or_b64 vcc, vcc, s[46:47]
    s_cmp_eq_u32 s44, 1
    s_cbranch_scc1 {OUT}
    s_cbranch_vccnz {SLOW}
    {OUT}:
    """)
    for i in range(6): g(f"v_cvt_pk_bf16_f32 v{P+i}, v{S[0]+2*i}, v{S[0]+2*i+1}")
    g(f"buffer_store_dwordx2 {vr(P,2)}, v24, s[16:19], 0 offen {st_flags}")
    g(f"buffer_store_dwordx2 {vr(P+2,2)}, v24, s[16:19], 0 offen offset:16 {st_flags}")
    g(f"s_mov_b32 exec_hi, 0\nbuffer_store_dwordx2 {vr(P+4,2)}, v24, s[16:19], 0 offen offset:32 {st_flags}\ns_mov_b32 exec_hi, -1")
    if diag:
        stamp(g, 2, diag)
        g("s_waitcnt vmcnt(0)")
        stamp(g, 3, diag)
        stamp_out(g, 1, 4, diag)
    g(f"{END}:\ns_endpgm")
    g(f"{SLOW}:")
    g("s_mov_b32 s44, 1\nv_mov_b32 v12, v25\nv_mov_b32 v13, v26")
    for n in range(9):
        t = 8 - n
        for r in kreads(t, 0): g(r)
        g("s_waitcnt lgkmcnt(0)")
        for m in qk(t, 0, 0): g(m)
        g("s_nop 7\ns_nop 3")
        maxtree(0, 27, n == 0)
        if n < 8: g(f"s_cmp_eq_u32 s29, {n+1}\ns_cbranch_scc1 {SET}")
    g(f"s_branch {SET}")
    return desc(name, 152)
```

```python
from common import *
from k1 import stamp, stamp_out

K3_LDS = 102400
def k3(g, name="k3_kernel", diag=False):
    g.begin(name)
    END = g.lab("k3end")
    if diag: g("s_memrealtime s[64:65]\ns_memtime s[68:69]")
    g(f"s_cmp_ge_u32 s2, 256\ns_cbranch_scc1 {END}")
    g(f"s_load_dwordx2 s[4:5], s[0:1], {KA['wo']}\ns_load_dwordx2 s[6:7], s[0:1], {KA['out']}\ns_load_dwordx2 s[24:25], s[0:1], {KA['ws']}")
    g("""
    s_and_b32 s26, s2, 7
    s_lshr_b32 s27, s2, 3
    s_and_b32 s28, s26, 1
    s_lshr_b32 s26, s26, 1
    s_lshl_b32 s26, s26, 3
    s_and_b32 s20, s27, 7
    s_add_u32 s20, s20, s26
    s_lshr_b32 s21, s27, 3
    s_lshl_b32 s28, s28, 2
    s_add_u32 s21, s21, s28
    v_lshrrev_b32 v1, 6, v0
    v_and_b32 v2, 63, v0
    s_nop 0
    v_readfirstlane_b32 s23, v1
    """)
    for n in range(5):
        g(f"""
        v_add_u32 v3, {64*n}, v2
        v_mul_u32_u24 v4, 205, v3
        v_lshrrev_b32 v4, 11, v4
        v_mul_u32_u24 v5, 10, v4
        v_sub_u32 v5, v3, v5
        v_bfe_u32 v6, v4, 2, 1
        v_bfe_u32 v7, v4, 3, 1
        v_xor_b32 v6, v6, v7
        v_mul_u32_u24 v6, 12, v6
        v_xor_b32 v4, v4, v6
        v_mul_u32_u24 v4, 1280, v4
        v_lshl_add_u32 v{10+n}, v5, 4, v4
        """)
        if 0 < n < 4: g(f"v_subrev_u32 v{10+n}, {1024*n}, v{10+n}")
    g(f"""
    s_mul_i32 s30, s21, 160
    s_mul_i32 s31, s23, {32*1280}
    s_add_u32 s30, s30, s31
    s_mul_i32 s32, s23, 5120
    v_and_b32 v3, 15, v2
    v_lshrrev_b32 v4, 4, v2
    s_lshl_b32 s33, s20, 6
    s_lshl_b32 s34, s23, 4
    s_add_u32 s33, s33, s34
    v_add_u32 v5, s33, v3
    v_mul_u32_u24 v6, 1280, v5
    v_lshl_add_u32 v15, v4, 4, v6
    s_mov_b32 s35, {WS_O}
    s_waitcnt lgkmcnt(0)
    """)
    g.srd(8, 4, SZ['wo']); g.srd(12, 6, SZ['out']); g.srd(16, 24, SZ['ws'])
    OF = 48
    for rd in range(5):
        g(f"s_add_u32 m0, s32, {rd*20480}\ns_nop 0")
        for n in range(4): g(f"buffer_load_dwordx4 v{10+n}, s[8:11], s30 offen offset:{1024*n} lds")
        g(f"s_add_u32 m0, s32, {rd*20480+4096}\ns_nop 0")
        g(f"buffer_load_dwordx4 v14, s[8:11], s30 offen lds")
        for ks in range(4):
            s = 4 * rd + ks
            g(f"buffer_load_dwordx4 {vr(OF+4*s,4)}, v15, s[16:19], s35 offen offset:{64*s}")
        g(f"s_add_u32 s30, s30, {128*1280}")
        if rd < 4: g("s_barrier")
    g(f"""
    v_lshrrev_b32 v6, 5, v2
    v_bfe_u32 v7, v2, 4, 1
    v_lshlrev_b32 v6, 4, v6
    v_lshl_add_u32 v6, v7, 2, v6
    v_bfe_u32 v7, v2, 2, 2
    v_add_u32 v6, v6, v7
    v_mul_u32_u24 v6, 160, v6
    v_and_b32 v7, 3, v2
    v_lshl_add_u32 v16, v7, 3, v6
    v_add_u32 v17, 51200, v16
    v_mul_u32_u24 v5, 2560, v5
    s_mul_i32 s36, s21, 160
    v_lshl_add_u32 v5, v4, 3, v5
    v_add_u32 v18, s36, v5
    """)
    ACC = 20; WF = [128, 148]
    def reads(s):
        base = 16 if s < 10 else 17; o = (s % 10) * 5120
        return [f"ds_read_b64_tr_b16 {vr(WF[s&1]+4*T+2*sec,2)}, v{base} offset:{o+32*T+1280*sec}" for T in range(5) for sec in range(2)]
    def mf(s, T):
        c = "0" if s == 0 else vr(ACC + 4 * T, 4)
        return f"v_mfma_f32_16x16x32_bf16 {vr(ACC+4*T,4)}, {vr(WF[s&1]+4*T,4)}, {vr(OF+4*s,4)}, {c}"
    g("s_waitcnt vmcnt(36)\ns_barrier")
    stamp(g, 0, diag)
    for r in reads(0): g(r)
    for s in range(20):
        nxt = reads(s + 1) if s < 19 else []
        g("s_waitcnt lgkmcnt(0)")
        if s % 4 == 3 and s < 19:
            rd = s // 4 + 1
            for T in range(3): g(mf(s, T))
            g(f"s_waitcnt vmcnt({9*(4-rd)})\ns_barrier")
            for r in nxt: g(r)
            for T in range(3, 5): g(mf(s, T))
        else:
            for T in range(5):
                g(mf(s, T))
                for r in nxt[2*T:2*T+2]: g(r)
    stamp(g, 1, diag)
    g("s_nop 7")
    for T in range(5):
        g(f"v_cvt_pk_bf16_f32 v{128+2*T}, v{ACC+4*T}, v{ACC+4*T+1}\nv_cvt_pk_bf16_f32 v{129+2*T}, v{ACC+4*T+2}, v{ACC+4*T+3}")
        g(f"buffer_store_dwordx2 {vr(128+2*T,2)}, v18, s[12:15], 0 offen offset:{32*T}")
    if diag:
        stamp(g, 2, diag)
        g("s_waitcnt vmcnt(0)")
        stamp(g, 3, diag)
        stamp_out(g, 2, 4, diag)
    g(f"{END}:\ns_endpgm")
    return desc(name, 168)
```

```python
from common import *
def ntgemm(g, name, nwg, nct, srdA, srdB, ldA, ldB, parts, K, store):
    pass
def kb1(g, name="kb1_kernel"):
    g.begin(name); END = g.lab("e")
    g(f"s_cmp_ge_u32 s2, 640\ns_cbranch_scc1 {END}")
    g(f"s_load_dwordx2 s[4:5], s[0:1], {KA['bx']}\ns_load_dwordx4 s[28:31], s[0:1], {KA['hre']}\ns_load_dwordx2 s[24:25], s[0:1], {KA['ws']}")
    g("s_and_b32 s20, s2, 31\ns_lshr_b32 s21, s2, 5\ns_cmp_ge_u32 s21, 10\ns_cselect_b32 s22, 1, 0\ns_cselect_b32 s26, 10, 0\ns_sub_u32 s21, s21, s26")
    g("s_waitcnt lgkmcnt(0)\ns_cmp_eq_u32 s22, 1\ns_cselect_b32 s6, s30, s28\ns_cselect_b32 s7, s31, s29")
    g.srd(8, 4, SZ['bx']); g.srd(12, 6, SZ['hre']); g.srd(16, 24, SZ['ws'])
    g("""v_and_b32 v2, 31, v0
    v_lshrrev_b32 v3, 5, v0
    s_lshl_b32 s26, s20, 6
    v_add_u32 v4, s26, v2
    v_mul_u32_u24 v4, 1280, v4
    v_lshl_add_u32 v4, v3, 4, v4
    v_add_u32 v5, 40960, v4
    s_lshl_b32 s27, s21, 6
    v_add_u32 v6, s27, v2
    v_mul_u32_u24 v7, 1280, v6
    v_lshl_add_u32 v7, v3, 4, v7
    v_add_u32 v8, 40960, v7
    """)
    for i in range(64): g(f"v_mov_b32 v{32+i}, 0")
    L = g.lab("l")
    g(f"s_mov_b32 s33, 0\n{L}:")
    g("buffer_load_dwordx4 v[12:15], v4, s[8:11], s33 offen\nbuffer_load_dwordx4 v[16:19], v5, s[8:11], s33 offen")
    g("buffer_load_dwordx4 v[20:23], v7, s[12:15], s33 offen\nbuffer_load_dwordx4 v[24:27], v8, s[12:15], s33 offen")
    g("s_waitcnt vmcnt(0)")
    for mt in range(2):
        for nt in range(2):
            a = 32 + 16 * (2 * mt + nt)
            g(f"v_mfma_f32_32x32x16_bf16 {vr(a,16)}, {vr(12+4*mt,4)}, {vr(20+4*nt,4)}, {vr(a,16)}")
    g(f"s_add_u32 s33, s33, 32\ns_cmp_lt_u32 s33, 1280\ns_cbranch_scc1 {L}")
    g("s_nop 7\ns_nop 7")
    g(f"""s_cmp_eq_u32 s22, 1
    s_cselect_b32 s34, {f2u(-1.0)}, {f2u(1.0)}
    s_lshl_b32 s35, s22, 12
    s_lshl_b32 s26, s26, 1
    s_add_u32 s35, s35, s26
    s_add_u32 s35, s35, {WS_B}
    v_lshlrev_b32 v6, 13, v6
    v_lshl_add_u32 v6, v3, 3, v6
    v_add_u32 v9, {32*8192}, v6
    """)
    for mt in range(2):
        for nt in range(2):
            a = 32 + 16 * (2 * mt + nt)
            for j in range(4):
                for i in range(4): g(f"v_mul_f32 v{a+4*j+i}, s34, v{a+4*j+i}")
                g(f"v_cvt_pk_bf16_f32 v{a+4*j}, v{a+4*j}, v{a+4*j+1}\nv_cvt_pk_bf16_f32 v{a+4*j+1}, v{a+4*j+2}, v{a+4*j+3}")
                g(f"buffer_store_dwordx2 {vr(a+4*j,2)}, v{6 if nt==0 else 9}, s[16:19], s35 offen offset:{64*mt+16*j}")
    g(f"{END}:\ns_endpgm")
    return desc(name, 96)

def kb2(g, name="kb2_kernel"):
    g.begin(name); END = g.lab("e")
    g(f"s_cmp_ge_u32 s2, 320\ns_cbranch_scc1 {END}")
    g(f"s_load_dwordx4 s[28:31], s[0:1], {KA['sre']}\ns_load_dwordx2 s[6:7], s[0:1], {KA['out']}\ns_load_dwordx2 s[24:25], s[0:1], {KA['ws']}")
    g("s_and_b32 s20, s2, 31\ns_lshr_b32 s21, s2, 5\ns_waitcnt lgkmcnt(0)")
    g.srd(8, 28, SZ['sre']); g.srd(40, 30, SZ['sim']); g.srd(12, 6, SZ['out']); g.srd(16, 24, SZ['ws'])
    g(f"""v_and_b32 v2, 31, v0
    v_lshrrev_b32 v3, 5, v0
    s_lshl_b32 s26, s20, 6
    v_add_u32 v10, s26, v2
    v_lshlrev_b32 v4, 12, v10
    v_lshl_add_u32 v4, v3, 4, v4
    v_add_u32 v5, {32*4096}, v4
    s_lshl_b32 s27, s21, 6
    v_add_u32 v6, s27, v2
    v_lshlrev_b32 v7, 13, v6
    v_lshl_add_u32 v7, v3, 4, v7
    v_add_u32 v7, {WS_B}, v7
    v_add_u32 v8, {32*8192}, v7
    """)
    for i in range(64): g(f"v_mov_b32 v{32+i}, 0")
    for part in range(2):
        L = g.lab("l"); sd = 8 if part == 0 else 40
        g(f"s_mov_b32 s33, 0\ns_mov_b32 s34, {4096*part}\n{L}:")
        g(f"buffer_load_dwordx4 v[12:15], v4, s[{sd}:{sd+3}], s33 offen\nbuffer_load_dwordx4 v[16:19], v5, s[{sd}:{sd+3}], s33 offen")
        g("buffer_load_dwordx4 v[20:23], v7, s[16:19], s34 offen\nbuffer_load_dwordx4 v[24:27], v8, s[16:19], s34 offen")
        g("s_waitcnt vmcnt(0)")
        for mt in range(2):
            for nt in range(2):
                a = 32 + 16 * (2 * mt + nt)
                g(f"v_mfma_f32_32x32x16_bf16 {vr(a,16)}, {vr(20+4*nt,4)}, {vr(12+4*mt,4)}, {vr(a,16)}")
        g(f"s_add_u32 s33, s33, 32\ns_add_u32 s34, s34, 32\ns_cmp_lt_u32 s33, 4096\ns_cbranch_scc1 {L}")
    g("s_nop 7\ns_nop 7")
    g(f"""v_mul_u32_u24 v10, 2560, v10
    v_lshl_add_u32 v10, v3, 3, v10
    v_add_u32 v11, {32*2560}, v10
    s_lshl_b32 s35, s27, 1
    s_add_u32 s35, s35, 1280
    """)
    for mt in range(2):
        for nt in range(2):
            a = 32 + 16 * (2 * mt + nt)
            for j in range(4):
                g(f"v_cvt_pk_bf16_f32 v{a+4*j}, v{a+4*j}, v{a+4*j+1}\nv_cvt_pk_bf16_f32 v{a+4*j+1}, v{a+4*j+2}, v{a+4*j+3}")
                g(f"buffer_store_dwordx2 {vr(a+4*j,2)}, v{10+mt}, s[12:15], s35 offen offset:{64*nt+16*j}")
    g(f"{END}:\ns_endpgm")
    return desc(name, 96)

def kempty(g, name):
    g.begin(name); g("s_endpgm"); return desc(name, 8, 16)
```

```python
import sys
from common import *
import k1, k2, k3, kb_simple
def build(path, order, diag=False):
    g = G(); descs = []
    info = dict(k1=(256,256,131072), k2=(256,512,k2.K2_LDS), k3=(256,256,k3.K3_LDS), kb1=(640,64,0), kb2=(320,64,0), ke=(256,64,0))
    head = []
    for k in order:
        gr, bl, lds = info[k]
        head.append(f"; @launch kernel={k}_kernel grid=({gr},1,1) block=({bl},1,1) lds={lds}")
    fn = dict(k1=lambda: k1.k1(g, diag=diag), k2=lambda: k2.k2(g, diag=diag), k3=lambda: k3.k3(g, diag=diag),
              kb1=lambda: kb_simple.kb1(g), kb2=lambda: kb_simple.kb2(g), ke=lambda: kb_simple.kempty(g, "ke_kernel"))
    for k in dict.fromkeys(order): descs.append(fn[k]())
    src = "\n".join(head) + '\n.amdgcn_target "amdgcn-amd-amdhsa--gfx950"\n.text\n' + g.text() + '.section .rodata,"a"\n' + "".join(descs)
    open(path, "w").write(src)
if __name__ == "__main__":
    build(sys.argv[1], sys.argv[2].split(","), diag=len(sys.argv) > 3)
```
